```python
import torch

def _softmax(x, axis=-1):
    return torch.softmax(x, dim=axis)
def _gelu(x):
    return torch.nn.functional.gelu(x, approximate="tanh")
def _silu(x):
    return torch.nn.functional.silu(x)
def _sigmoid(x):
    return torch.sigmoid(x)
def _layernorm(x, axis=-1, eps=1e-5):
    m = x.mean(dim=axis, keepdim=True)
    v = x.var(dim=axis, keepdim=True, unbiased=False)
    return (x - m) / torch.sqrt(v + eps)
def _scatter_add(tgt, idx, src, axis=0):
    return tgt.clone().index_add_(axis, idx, src)
def _segment_sum(src, seg, n):
    out = torch.zeros((n,) + src.shape[1:], dtype=src.dtype)
    return out.index_add_(0, seg, src)
def _pad(x, pw):
    flat = tuple(v for pair in reversed(pw) for v in pair)
    return torch.nn.functional.pad(x, flat)

kernel_name = 'standalone__attention_interact_autoint__recsys'

def setup_inputs():

    _w = (lambda a: (lambda t: t.to(torch.bfloat16) if t.is_floating_point() else t)(torch.as_tensor(a)))
    B, F = 1024, 100
    D = max(2, (64 // 2) * 2)
    H = 2
    Dh = D // H
    return {
        "e": _w((lambda *s: torch.randn(*s, dtype=torch.bfloat16) * 0.05)(B, F, D).to(float)),
        "wq": _w((lambda *s: torch.randn(*s, dtype=torch.bfloat16) * 3.2)(H, D, Dh).to(float)),
        "wk": _w((lambda *s: torch.randn(*s, dtype=torch.bfloat16) * 3.2)(H, D, Dh).to(float)),
        "wv": _w((lambda *s: torch.randn(*s, dtype=torch.bfloat16) * 0.05)(H, D, Dh).to(float)),
        "wres": _w((lambda *s: torch.randn(*s, dtype=torch.bfloat16) * 0.05)(D, D).to(float)),
    }

def reference(e, wq, wk, wv, wres):
    H, D, Dh = wq.shape[0], wq.shape[1], wq.shape[2]
    B, F = e.shape[0], e.shape[1]
    q = torch.einsum('bfd,hdk->bhfk', e, wq)
    k = torch.einsum('bfd,hdk->bhfk', e, wk)
    v = torch.einsum('bfd,hdk->bhfk', e, wv)
    scale = float(Dh) ** -0.5
    scores = torch.einsum('bhfk,bhgk->bhfg', q, k) * scale
    attn = _softmax(scores, axis=-1)
    attn = (lambda x, dt: x.to(dt))(attn, v.dtype)
    ctx = torch.einsum('bhfg,bhgk->bhfk', attn, v)
    ctx = (lambda x, *d: x.permute(*d))(ctx, 0, 2, 1, 3).reshape(B, F, H * Dh)
    res = torch.einsum('bfd,de->bfe', e, wres)
    out = ctx + res
    mask = (lambda x, dt: x.to(dt))(out > 0, out.dtype)
    return out * mask
```

```python
import re


def vr(base, n=1):
    return f"v{base}" if n == 1 else f"v[{base}:{base + n - 1}]"


def rng(base, n):
    return list(range(base, base + n))


class I:
    def __init__(self, text, kind, w=(), r=(), c=(), sw=(), sr=(), mw=(), mr=(), vm_need=None, vm_tok=None, prio=None):
        self.text = text
        self.kind = kind
        self.w = set(w)
        self.r = set(r)
        self.c = set(c)
        self.sw = set(sw)
        self.sr = set(sr)
        self.mw = set(mw)
        self.mr = set(mr)
        self.vm_need = vm_need
        self.vm_tok = vm_tok
        self.prio = prio
        self.dst_exact = None
        self.c_exact = None

    def is_valu(self):
        return self.kind in ("valu", "trans", "perm", "dpp")

    def is_mfma(self):
        return self.kind in ("mfma32", "mfma16")

    def __repr__(self):
        return self.text


class Prog:
    def __init__(self):
        self.ins = []

    def add(self, i):
        self.ins.append(i)
        return i

    def _srcs(self, *ops):
        r, sr = [], []
        for o in ops:
            if isinstance(o, int):
                r.append(o)
            elif isinstance(o, str) and re.fullmatch(r"s\d+|vcc|vcc_lo|vcc_hi|m0|exec_lo|exec_hi", o):
                sr.append(o if not o.startswith("vcc") else "vcc")
        return r, sr

    def _t(self, o):
        return f"v{o}" if isinstance(o, int) else str(o)

    def v(self, op, d, *srcs, kind="valu", mods="", extra_r=(), sr_extra=()):
        r, sr = self._srcs(*srcs)
        txt = f"{op} v{d}, " + ", ".join(self._t(s) for s in srcs) + (" " + mods if mods else "")
        return self.add(I(txt, kind, w=[d], r=list(r) + list(extra_r), sr=list(sr) + list(sr_extra)))

    def exp(self, d, s):
        return self.v("v_exp_f32", d, s, kind="trans")

    def rcp(self, d, s):
        return self.v("v_rcp_f32", d, s, kind="trans")

    def cvtpk(self, d, a, b):
        return self.v("v_cvt_pk_bf16_f32", d, a, b)

    def swap32(self, a, b):
        return self.add(I(f"v_permlane32_swap_b32 v{a}, v{b}", "perm", w=[a, b], r=[a, b]))

    def swap16(self, a, b):
        return self.add(I(f"v_permlane16_swap_b32 v{a}, v{b}", "perm", w=[a, b], r=[a, b]))

    def dpp(self, op, d, *srcs, ctrl, row_mask="0xf", bank_mask="0xf", bound_ctrl=False, keep=False):
        r, sr = self._srcs(*srcs)
        txt = f"{op} v{d}, " + ", ".join(self._t(s) for s in srcs) + f" {ctrl} row_mask:{row_mask} bank_mask:{bank_mask}"
        if bound_ctrl:
            txt += " bound_ctrl:0"
        rr = list(r) + ([d] if keep else [])
        return self.add(I(txt, "dpp", w=[d], r=rr, sr=sr))

    def vcmp(self, op, dst, a, b):
        r, sr = self._srcs(a, b)
        sw = ["vcc"] if dst == "vcc" else [f"s{k}" for k in _spair(dst)]
        return self.add(I(f"{op} {dst}, {self._t(a)}, {self._t(b)}", "valu", r=r, sr=sr, sw=sw))

    def mfma32(self, d, a, b, c):
        cr = rng(c, 16) if isinstance(c, int) else []
        ct = vr(c, 16) if isinstance(c, int) else str(c)
        i = I(f"v_mfma_f32_32x32x16_bf16 {vr(d, 16)}, {vr(a, 4)}, {vr(b, 4)}, {ct}", "mfma32",
              w=rng(d, 16), r=rng(a, 4) + rng(b, 4) + cr, c=cr)
        i.dst_exact = (d, 16)
        i.c_exact = (c, 16) if isinstance(c, int) else None
        i.ab = set(rng(a, 4) + rng(b, 4))
        return self.add(i)

    def mfma16(self, d, a, b, c):
        cr = rng(c, 4) if isinstance(c, int) else []
        ct = vr(c, 4) if isinstance(c, int) else str(c)
        i = I(f"v_mfma_f32_16x16x32_bf16 {vr(d, 4)}, {vr(a, 4)}, {vr(b, 4)}, {ct}", "mfma16",
              w=rng(d, 4), r=rng(a, 4) + rng(b, 4) + cr, c=cr)
        i.dst_exact = (d, 4)
        i.c_exact = (c, 4) if isinstance(c, int) else None
        i.ab = set(rng(a, 4) + rng(b, 4))
        return self.add(i)

    def dsr(self, op, d, n, addr, off=0, mr=(), vm_need=None):
        txt = f"{op} {vr(d, n)}, v{addr}" + (f" offset:{off}" if off else "")
        return self.add(I(txt, "dsr", w=rng(d, n), r=[addr], mr=mr, vm_need=vm_need))

    def dsw(self, op, addr, s, n, off=0, mw=()):
        txt = f"{op} v{addr}, {vr(s, n)}" + (f" offset:{off}" if off else "")
        return self.add(I(txt, "dsw", r=[addr] + rng(s, n), mw=mw))

    def dma(self, voff, srd, soff, off=0, tok=None, mw=(), flags=""):
        srs = [f"s{srd + k}" for k in range(4)] + ["m0"]
        if isinstance(soff, str) and soff.startswith("s"):
            srs.append(soff)
        txt = f"buffer_load_dwordx4 v{voff}, s[{srd}:{srd + 3}], {soff} offen" + (f" offset:{off}" if off else "") + (f" {flags}" if flags else "") + " lds"
        return self.add(I(txt, "dma", r=[voff], sr=srs, vm_tok=tok, mw=mw))

    def store(self, s, n, voff, srd, soff="0", off=0, flags=""):
        op = {1: "buffer_store_dword", 2: "buffer_store_dwordx2", 4: "buffer_store_dwordx4"}[n]
        srs = [f"s{srd + k}" for k in range(4)]
        if isinstance(soff, str) and soff.startswith("s"):
            srs.append(soff)
        txt = f"{op} {vr(s, n)}, v{voff}, s[{srd}:{srd + 3}], {soff} offen" + (f" offset:{off}" if off else "") + (f" {flags}" if flags else "")
        i = I(txt, "store", r=[voff] + rng(s, n), sr=srs, mw=["gout"])
        i.wide = n >= 3
        i.data = set(rng(s, n))
        return self.add(i)

    def s(self, text, sw=(), sr=()):
        return self.add(I(text, "salu", sw=sw, sr=sr))

    def raw(self, text, kind="misc", **kw):
        return self.add(I(text, kind, **kw))

    def label(self, name):
        return self.add(I(name + ":", "label"))


def _spair(s):
    m = re.fullmatch(r"s\[(\d+):(\d+)\]", s)
    return range(int(m.group(1)), int(m.group(2)) + 1)


def mfma_pass(i):
    return 8 if i.kind == "mfma32" else 4


def required_states(p, c):
    need = 0
    if p.is_valu():
        if c.is_mfma() and (p.w & c.r):
            need = max(need, 2)
        if c.kind in ("perm", "dpp") and (p.w & c.r):
            need = max(need, 2)
        if p.kind == "trans" and c.is_valu() and c.kind != "trans" and (p.w & c.r):
            need = max(need, 1)
        if p.kind == "trans" and c.kind in ("dsw", "store", "dsr", "dma") and (p.w & c.r):
            need = max(need, 1)
        if c.kind == "readlane" and (p.w & c.r):
            need = max(need, 1)
        if p.sw:
            if c.is_valu() and (p.sw & c.sr):
                need = max(need, 2)
            if c.kind in ("dma", "store") and (p.sw & c.sr):
                need = max(need, 5)
    if p.kind == "readlane":
        if c.is_valu() and (p.sw & c.sr):
            need = max(need, 2)
        if c.kind in ("dma", "store") and (p.sw & c.sr):
            need = max(need, 5)
        if c.kind == "salu" and (p.sw & c.sr):
            need = max(need, 4)
    if p.is_mfma():
        n = mfma_pass(p)
        if c.is_mfma():
            if p.w & c.ab:
                need = max(need, 12 if n == 8 else 8)
            if p.w & c.c:
                if not (c.c_exact == p.dst_exact and c.kind == p.kind):
                    need = max(need, 10 if n == 8 else 6)
        elif c.is_valu() or c.kind == "readlane":
            if p.w & (c.r | c.w):
                need = max(need, 12 if n == 8 else 8)
            if p.c & c.w:
                need = max(need, 7 if n == 8 else 3)
        elif c.kind in ("dsr", "dsw", "store", "dma"):
            if p.w & (c.r | c.w):
                need = max(need, 12 if n == 8 else 8)
    if p.kind == "salu" and "m0" in p.sw and c.kind == "dma":
        need = max(need, 1)
    if p.kind == "store" and getattr(p, "wide", False):
        if c.is_valu() and (p.data & c.w):
            need = max(need, 2)
        elif (p.data & c.w):
            need = max(need, 1)
    return need


def states_of(i):
    m = re.fullmatch(r"s_nop (\d+)", i.text)
    if m:
        return int(m.group(1)) + 1
    if i.kind == "label":
        return 0
    return 1


def insert_waitcnts(ins):
    out = []
    lds_q = []
    vm_q = []
    for i in ins:
        if i.kind == "misc" and i.text.startswith("s_waitcnt"):
            m = re.search(r"lgkmcnt\((\d+)\)", i.text)
            if m:
                n = int(m.group(1))
                lds_q = lds_q[len(lds_q) - n:] if n else []
            m = re.search(r"vmcnt\((\d+)\)", i.text)
            if m:
                n = int(m.group(1))
                vm_q = vm_q[len(vm_q) - n:] if n else []
            out.append(i)
            continue
        lg = None
        touched = i.r | i.w
        for k in range(len(lds_q) - 1, -1, -1):
            if lds_q[k] & touched:
                lg = len(lds_q) - 1 - k
                break
        vm = None
        if i.vm_need is not None:
            needs = i.vm_need if isinstance(i.vm_need, (list, tuple)) else [i.vm_need]
            for k in range(len(vm_q) - 1, -1, -1):
                if vm_q[k] in needs:
                    vm = len(vm_q) - 1 - k
                    break
        if lg is not None or vm is not None:
            t = "s_waitcnt"
            if vm is not None:
                vm = min(vm, 63)
                t += f" vmcnt({vm})"
                vm_q = vm_q[len(vm_q) - vm:] if vm else []
            if lg is not None:
                lg = min(lg, 15)
                t += f" lgkmcnt({lg})"
                lds_q = lds_q[len(lds_q) - lg:] if lg else []
            out.append(I(t, "misc"))
        if i.kind == "dsr":
            lds_q.append(set(i.w))
        elif i.kind == "dsw":
            lds_q.append(set())
        elif i.kind in ("dma", "store"):
            vm_q.append(i.vm_tok)
        out.append(i)
    return out


def insert_nops(ins, window=24):
    out = []
    for i in ins:
        if i.kind == "label":
            out.append(i)
            continue
        need_extra = 0
        dist = 0
        for p in reversed(out):
            if dist >= window:
                break
            req = required_states(p, i)
            if req > dist:
                need_extra = max(need_extra, req - dist)
            dist += states_of(p)
        while need_extra > 0:
            n = min(need_extra, 16)
            out.append(I(f"s_nop {n - 1}", "misc"))
            need_extra -= n
        out.append(i)
    return out


ISSUE = {"valu": 4, "trans": 8, "perm": 8, "dpp": 4, "mfma32": 8, "mfma16": 8, "dsr": 8, "dsw": 8, "dma": 8,
         "store": 8, "salu": 4, "misc": 4, "readlane": 4}
PIPE = {"mfma32": 32, "mfma16": 16}
LDS_LAT = 128


def deps(ins):
    n = len(ins)
    preds = [[] for _ in range(n)]
    lastw = {}
    readers = {}
    last_fixed = None
    for k, i in enumerate(ins):
        ds = set()
        rd = [("v", x) for x in i.r] + [("s", x) for x in i.sr] + [("m", x) for x in i.mr]
        wr = [("v", x) for x in i.w] + [("s", x) for x in i.sw] + [("m", x) for x in i.mw]
        if i.kind in ("dma", "store"):
            rd.append(("o", "vm"))
            wr.append(("o", "vm"))
        if i.vm_need is not None:
            needs = i.vm_need if isinstance(i.vm_need, (list, tuple)) else [i.vm_need]
            for t in needs:
                rd.append(("t", t))
        if i.vm_tok is not None:
            wr.append(("t", i.vm_tok))
        for x in rd:
            if x in lastw:
                ds.add(lastw[x])
        for x in wr:
            if x in lastw:
                ds.add(lastw[x])
            for j in readers.get(x, ()):
                ds.add(j)
        ds.discard(k)
        for j in ds:
            p = ins[j]
            st = required_states(p, i)
            lat = 4 * (st + 1) if st else ISSUE.get(p.kind, 4)
            if p.kind == "dsr" and (p.w & (i.r | i.w)):
                lat = max(lat, LDS_LAT)
            preds[k].append((j, lat, st))
        for x in rd:
            readers.setdefault(x, []).append(k)
        for x in wr:
            lastw[x] = k
            readers[x] = []
    return preds


def schedule(ins, lookahead=400, vm_ready=None, verbose=False):
    n = len(ins)
    preds = deps(ins)
    succs = [[] for _ in range(n)]
    npred = [0] * n
    for k in range(n):
        for (j, lat, st) in preds[k]:
            succs[j].append(k)
        npred[k] = len(preds[k])
    done_t = [None] * n
    done_s = [None] * n
    ready = [k for k in range(n) if npred[k] == 0]
    t = 0
    slot = 0
    pipe_free = 0
    order = []
    first_unsched = 0
    sched = [False] * n
    key = lambda k: (ins[k].prio if ins[k].prio is not None else k)
    while len(order) < n:
        while first_unsched < n and sched[first_unsched]:
            first_unsched += 1
        best = None
        for k in ready:
            if k > first_unsched + lookahead:
                continue
            e = t
            for (j, lat, st) in preds[k]:
                e = max(e, done_t[j] + lat)
                if st:
                    miss = st - (slot - done_s[j] - 1)
                    if miss > 0:
                        e = max(e, t + 4 * miss)
            if ins[k].is_mfma():
                e = max(e, pipe_free)
            if vm_ready and ins[k].vm_need is not None:
                needs = ins[k].vm_need if isinstance(ins[k].vm_need, (list, tuple)) else [ins[k].vm_need]
                for tok in needs:
                    e = max(e, vm_ready.get(tok, 0))
            cand = (e, key(k), k)
            if best is None or cand < best:
                best = cand
        e, _, k = best
        ready.remove(k)
        sched[k] = True
        miss_max = 0
        for (j, lat, st) in preds[k]:
            if st:
                miss_max = max(miss_max, st - (slot - done_s[j] - 1))
        slot += miss_max
        done_t[k] = e
        done_s[k] = slot
        slot += 1
        t = e + ISSUE.get(ins[k].kind, 4)
        if ins[k].is_mfma():
            pipe_free = e + PIPE[ins[k].kind]
        order.append(k)
        for s_ in succs[k]:
            npred[s_] -= 1
            if npred[s_] == 0:
                ready.append(s_)
    if verbose:
        print(f"; schedule: {n} instrs, modelled {t} cycles")
    return [ins[k] for k in order], t


def emit(ins):
    out = []
    for i in ins:
        out.append(i.text if i.kind == "label" else "    " + i.text)
    return "\n".join(out)
```

```python
import sys, struct, math
sys.path.insert(0, 'gen')
from asmlib import *

NAME = "standalone__attention_interact_autoint__recsys"
C_SCALE = math.log2(math.e) / math.sqrt(32.0)


def f32hex(x):
    return "0x%08x" % struct.unpack("<I", struct.pack("<f", x))[0]


CHEX = f32hex(C_SCALE)
W_BYTES = 32768
E_BYTES = 13312
LDS_TOTAL = W_BYTES + 8 * E_BYTES

SRD_E, SRD_W, SRD_O = 16, 20, 24
S_W, S_B, S_HD, S_EB = 28, 29, 30, 31
S_MASK = 32
S_WOFF = 34
S_K4 = 38
S_T = 42

V_L = 1
V_T0, V_T1, V_T2, V_T3 = 2, 3, 4, 5
V_EG0, V_EG1, V_WG = 6, 7, 8
V_ER = 9
V_E3 = 13
V_WR = 17
V_OW = 18
V_OR = 22
V_OG = 23
V_ONES = 24
V_CI = 28
V_P3 = 32
FREE = 36


def prologue(p):
    p.s("s_cmp_ge_u32 s2, 256", sw=["scc"], sr=["s2"])
    p.raw("s_cbranch_scc1 L_end")
    p.raw("s_load_dwordx8 s[4:11], s[0:1], 0")
    p.raw("s_load_dwordx4 s[12:15], s[0:1], 32")
    p.v("v_lshrrev_b32", V_T0, "6", 0)
    p.v("v_and_b32", V_L, "63", 0)
    p.raw(f"v_readfirstlane_b32 s{S_W}, v{V_T0}", kind="readlane", r=[V_T0], sw=[f"s{S_W}"])
    p.v("v_lshrrev_b32", V_T0, "3", V_L)
    p.v("v_lshlrev_b32", V_T0, "7", V_T0)
    p.v("v_lshrrev_b32", V_T1, "4", V_L)
    p.v("v_and_b32", V_T2, "7", V_L)
    p.v("v_xor_b32", V_T1, V_T1, V_T2)
    p.v("v_lshl_add_u32", V_EG0, V_T1, "4", V_T0)
    p.v("v_xor_b32", V_EG1, "64", V_EG0)
    p.v("v_lshlrev_b32", V_T0, "4", V_L)
    p.v("v_lshrrev_b32", V_T1, "2", V_L)
    p.v("v_lshlrev_b32", V_T1, "7", V_T1)
    p.v("v_and_b32", V_T2, "3", V_L)
    p.v("v_lshl_add_u32", V_T1, V_T2, "4", V_T1)
    p.s(f"s_lshr_b32 s{S_T}, s{S_W}, 1", sw=[f"s{S_T}", "scc"], sr=[f"s{S_W}"])
    p.s(f"s_and_b32 s{S_HD}, s{S_W}, 1", sw=[f"s{S_HD}", "scc"], sr=[f"s{S_W}"])
    p.s(f"s_lshl_b32 s{S_B}, s2, 2", sw=[f"s{S_B}", "scc"], sr=["s2"])
    p.s(f"s_add_u32 s{S_B}, s{S_B}, s{S_T}", sw=[f"s{S_B}", "scc"], sr=[f"s{S_B}", f"s{S_T}"])
    p.s(f"s_mul_i32 s{S_T+1}, s{S_B}, 12800", sw=[f"s{S_T+1}"], sr=[f"s{S_B}"])
    p.s(f"s_mul_i32 s{S_EB}, s{S_W}, {E_BYTES}", sw=[f"s{S_EB}"], sr=[f"s{S_W}"])
    p.s(f"s_add_u32 s{S_EB}, s{S_EB}, {W_BYTES}", sw=[f"s{S_EB}", "scc"], sr=[f"s{S_EB}"])
    p.s(f"s_movk_i32 s{S_K4}, 0x1000", sw=[f"s{S_K4}"])
    p.s(f"s_movk_i32 s{S_K4+1}, 0x2000", sw=[f"s{S_K4+1}"])
    p.s(f"s_movk_i32 s{S_K4+2}, 0x3000", sw=[f"s{S_K4+2}"])
    p.s(f"s_cmp_eq_u32 s{S_T}, 3", sw=["scc"], sr=[f"s{S_T}"])
    p.s(f"s_cselect_b64 s[{S_MASK}:{S_MASK+1}], -1, 0", sw=[f"s{S_MASK}", f"s{S_MASK+1}"], sr=["scc"])
    p.s(f"s_cselect_b32 s{S_T+2}, 6, 12", sw=[f"s{S_T+2}"], sr=["scc"])
    p.s(f"s_cselect_b32 s{S_T+3}, 0x400, 0", sw=[f"s{S_T+3}"], sr=["scc"])
    p.s(f"s_lshl_b32 s{S_WOFF}, s{S_HD}, s{S_T+2}", sw=[f"s{S_WOFF}", "scc"], sr=[f"s{S_HD}", f"s{S_T+2}"])
    for i in range(1, 4):
        p.s(f"s_add_u32 s{S_WOFF+i}, s{S_WOFF+i-1}, s{S_T+3}", sw=[f"s{S_WOFF+i}", "scc"], sr=[f"s{S_WOFF+i-1}", f"s{S_T+3}"])
    p.add(I(f"v_cndmask_b32 v{V_WG}, v{V_T0}, v{V_T1}, s[{S_MASK}:{S_MASK+1}]", "valu", w=[V_WG], r=[V_T0, V_T1],
            sr=[f"s{S_MASK}", f"s{S_MASK+1}"]))
    p.raw("s_waitcnt lgkmcnt(0)")
    p.s(f"s_add_u32 s{SRD_E}, s4, s{S_T+1}", sw=[f"s{SRD_E}", "scc"])
    p.s(f"s_addc_u32 s{SRD_E+1}, s5, 0", sw=[f"s{SRD_E+1}", "scc"])
    p.s(f"s_movk_i32 s{SRD_E+2}, 12800", sw=[f"s{SRD_E+2}"])
    p.s(f"s_mov_b32 s{SRD_E+3}, 0x20000", sw=[f"s{SRD_E+3}"])
    p.s(f"s_add_u32 s{SRD_O}, s14, s{S_T+1}", sw=[f"s{SRD_O}", "scc"])
    p.s(f"s_addc_u32 s{SRD_O+1}, s15, 0", sw=[f"s{SRD_O+1}", "scc"])
    p.s(f"s_movk_i32 s{SRD_O+2}, 12800", sw=[f"s{SRD_O+2}"])
    p.s(f"s_mov_b32 s{SRD_O+3}, 0x20000", sw=[f"s{SRD_O+3}"])
    p.s(f"s_mov_b64 s[{SRD_W}:{SRD_W+1}], s[6:7]", sw=[f"s{SRD_W}", f"s{SRD_W+1}"])
    for m in (1, 2, 3):
        p.s(f"s_cmp_eq_u32 s{S_T}, {m}", sw=["scc"])
        p.s(f"s_cselect_b64 s[{SRD_W}:{SRD_W+1}], s[{6+2*m}:{7+2*m}], s[{SRD_W}:{SRD_W+1}]", sw=[f"s{SRD_W}", f"s{SRD_W+1}"])
    p.s(f"s_movk_i32 s{SRD_W+2}, 0x2000", sw=[f"s{SRD_W+2}"])
    p.s(f"s_mov_b32 s{SRD_W+3}, 0x20000", sw=[f"s{SRD_W+3}"])
    p.s(f"s_lshl_b32 m0, s{S_W}, 12", sw=["m0", "scc"])
    for i in range(4):
        p.dma(V_WG, SRD_W, f"s{S_WOFF+i}", off=1024 * i, tok="W")


def e_dma(p, order=(0, 1, 2, 3)):
    for k in order:
        if k == 0:
            p.s(f"s_mov_b32 m0, s{S_EB}", sw=["m0"], sr=[f"s{S_EB}"])
        else:
            p.s(f"s_add_u32 m0, s{S_EB}, {4096*k}", sw=["m0", "scc"], sr=[f"s{S_EB}"])
        for j in range(4 if k < 3 else 1):
            p.dma(V_EG0 if j % 2 == 0 else V_EG1, SRD_E, "0" if k == 0 else f"s{S_K4+k-1}", off=1024 * j, tok=f"E{k}")


def lane_consts(p):
    T0, T1, T2, T3 = V_T0, V_T1, V_T2, V_T3
    p.v("v_and_b32", T0, "31", V_L)
    p.v("v_lshrrev_b32", T1, "5", V_L)
    p.v("v_bfe_u32", T2, V_L, "1", "3")
    p.v("v_xor_b32", T2, T2, T1)
    p.v("v_lshlrev_b32", T2, "4", T2)
    p.v("v_lshl_add_u32", T2, T0, "7", T2)
    p.v("v_add_u32", V_ER, f"s{S_EB}", T2)
    for s in (1, 2, 3):
        p.v("v_xor_b32", V_ER + s, str(32 * s) if 32 * s <= 64 else hex(32 * s), V_ER)
    p.v("v_and_b32", T2, "3", V_L)
    p.v("v_bfe_u32", T3, V_L, "1", "1")
    p.v("v_xor_b32", T3, T3, T1)
    p.v("v_lshlrev_b32", T3, "4", T3)
    p.v("v_lshl_add_u32", T3, T2, "7", T3)
    p.v("v_lshrrev_b32", T2, "2", T0)
    p.vcmp("v_cmp_eq_u32", "vcc", "0", T2)
    p.vcmp("v_cmp_eq_u32", f"s[{S_MASK}:{S_MASK+1}]", "5", T2)
    p.raw(f"s_or_b64 vcc, vcc, s[{S_MASK}:{S_MASK+1}]", kind="salu", sw=["vcc", "scc"], sr=["vcc", f"s{S_MASK}", f"s{S_MASK+1}"])
    p.v("v_mov_b32", T2, "0x200")
    p.add(I(f"v_cndmask_b32 v{T3}, v{T2}, v{T3}, vcc", "valu", w=[T3], r=[T2, T3], sr=["vcc"]))
    p.v("v_add_u32", T3, f"s{S_EB}", T3)
    p.v("v_add_u32", V_E3, "0x3000", T3)
    for s in (1, 2, 3):
        p.v("v_xor_b32", V_E3 + s, str(32 * s) if 32 * s <= 64 else hex(32 * s), V_E3)
    p.v("v_bfe_u32", T2, V_L, "2", "2")
    p.v("v_lshl_add_u32", T2, T1, "3", T2)
    p.v("v_lshlrev_b32", T2, "6", T2)
    p.v("v_bfe_u32", T3, V_L, "4", "1")
    p.v("v_lshl_add_u32", T2, T3, "5", T2)
    p.v("v_and_b32", T3, "3", V_L)
    p.v("v_lshl_add_u32", T2, T3, "3", T2)
    p.s(f"s_lshl_b32 s{S_T+4}, s{S_HD}, 12", sw=[f"s{S_T+4}", "scc"], sr=[f"s{S_HD}"])
    p.v("v_add_u32", V_WR, f"s{S_T+4}", T2)
    p.v("v_bfe_u32", T2, V_L, "1", "2")
    p.v("v_lshlrev_b32", T2, "4", T2)
    p.v("v_lshl_add_u32", T2, T0, "6", T2)
    p.v("v_lshl_add_u32", T2, T1, "3", T2)
    p.v("v_add_u32", V_OW, f"s{S_EB}", T2)
    for q in (1, 2, 3):
        p.v("v_xor_b32", V_OW + q, str(16 * q), V_OW)
    p.v("v_lshrrev_b32", T2, "2", V_L)
    p.v("v_bfe_u32", T3, V_L, "3", "2")
    p.v("v_and_b32", T0, "3", V_L)
    p.v("v_xor_b32", T3, T3, T0)
    p.v("v_lshlrev_b32", T3, "4", T3)
    p.v("v_lshl_add_u32", T3, T2, "6", T3)
    p.v("v_add_u32", V_OR, f"s{S_EB}", T3)
    p.v("v_lshlrev_b32", T0, "4", T0)
    p.v("v_lshl_add_u32", T0, T2, "7", T0)
    p.s(f"s_lshl_b32 s{S_T+4}, s{S_HD}, 6", sw=[f"s{S_T+4}", "scc"], sr=[f"s{S_HD}"])
    p.v("v_add_u32", V_OG, f"s{S_T+4}", T0)
    p.v("v_bfe_u32", T2, V_L, "2", "1")
    p.v("v_bfe_u32", T3, V_L, "4", "1")
    p.vcmp("v_cmp_eq_u32", "vcc", T2, T3)
    p.v("v_mov_b32", T2, "0x3f803f80")
    for k in range(4):
        p.add(I(f"v_cndmask_b32 v{V_ONES+k}, 0, v{T2}, vcc", "valu", w=[V_ONES + k], r=[T2], sr=["vcc"]))
    p.vcmp("v_cmp_lt_u32", "vcc", "31", V_L)
    p.v("v_mov_b32", T2, "0xff800000")
    for k in range(4):
        p.add(I(f"v_cndmask_b32 v{V_CI+k}, 0, v{T2}, vcc", "valu", w=[V_CI + k], r=[T2], sr=["vcc"]))
    p.v("v_mov_b32", V_P3 + 2, "0")
    p.v("v_mov_b32", V_P3 + 3, "0")


def read_w(p, dst, mat):
    for s in range(4):
        for u in range(2):
            p.dsr("ds_read_b64_tr_b16", dst + 4 * s + 2 * u, 2, V_WR, off=mat * 8192 + (16 * s + 4 * u) * 64, mr=["W"])


def read_e(p, dst, t):
    for s in range(4):
        if t < 3:
            p.dsr("ds_read_b128", dst + 4 * s, 4, V_ER + s, off=4096 * t, mr=[f"E{t}"], vm_need=f"E{t}")
        else:
            p.dsr("ds_read_b128", dst + 4 * s, 4, V_E3 + s, mr=["E3"], vm_need="E3")


def slow_path(p):
    r = FREE
    WK, WV, WQ, WR = r, r + 16, r + 32, r + 48
    r += 64
    KP = [r + 8 * t for t in range(4)]
    r += 32
    VP = [r + 8 * t for t in range(4)]
    r += 28
    QP = [r + 8 * t for t in range(4)]
    r += 32
    S = [r + 16 * t for t in range(3)]
    r += 48
    S3 = r
    r += 4
    SUM = r
    r += 4
    M, M2, INV = r, r + 1, r + 2
    EF = WK if False else None
    CTX, RES, EF2 = WK, WV, WQ
    read_w(p, WK, 1)
    read_w(p, WV, 2)
    read_w(p, WQ, 0)
    read_w(p, WR, 3)
    EF = S[2]
    for t in range(4):
        read_e(p, EF, t)
        for s in range(4):
            p.mfma32(S[0], WK + 4 * s, EF + 4 * s, S[0] if s else "0")
        for s in range(4):
            p.mfma32(S[1], EF + 4 * s, WV + 4 * s, S[1] if s else "0")
        for k in range(8):
            p.cvtpk(KP[t] + k, S[0] + 2 * k, S[0] + 2 * k + 1)
        for s in range(4):
            p.mfma32(S[0], WQ + 4 * s, EF + 4 * s, S[0] if s else "0")
        for k in range(8 if t < 3 else 4):
            p.cvtpk(VP[t] + k, S[1] + 2 * k, S[1] + 2 * k + 1)
        for k in range(16):
            p.v("v_mul_f32", S[0] + k, CHEX, S[0] + k)
        for k in range(8):
            p.cvtpk(QP[t] + k, S[0] + 2 * k, S[0] + 2 * k + 1)
    for F in range(4):
        read_e(p, EF2, F)
        for t in range(3):
            for s in range(2):
                p.mfma32(S[t], KP[t] + 4 * s, QP[F] + 4 * s, S[t] if s else "0")
        for s in range(2):
            p.mfma16(S3, KP[3] + 4 * s, QP[F] + 4 * s, S3 if s else V_CI)
        for s in range(4):
            p.mfma32(RES, WR + 4 * s, EF2 + 4 * s, RES if s else "0")
        regs = [S[t] + k for t in range(3) for k in range(16)] + [S3 + k for k in range(4)]
        p.v("v_max_f32", M, regs[0], regs[1])
        for k in range(2, 52, 2):
            p.v("v_max3_f32", M, M, regs[k], regs[k + 1])
        p.v("v_mov_b32", M2, M)
        p.swap32(M, M2)
        p.v("v_max_f32", M, M, M2)
        for x in regs:
            p.v("v_sub_f32", x, x, M)
            p.exp(x, x)
        for t in range(3):
            for s in range(2):
                for k in range(4):
                    p.cvtpk(S[t] + 8 * s + k, S[t] + 8 * s + 2 * k, S[t] + 8 * s + 2 * k + 1)
        p.cvtpk(V_P3, S3, S3 + 1)
        p.cvtpk(V_P3 + 1, S3 + 2, S3 + 3)
        first = True
        for t in range(4):
            for s in range(2 if t < 3 else 1):
                b = S[t] + 8 * s if t < 3 else V_P3
                p.mfma32(CTX, VP[t] + 4 * s, b, "0" if first else CTX)
                p.mfma16(SUM, V_ONES, b, "0" if first else SUM)
                first = False
        p.rcp(INV, SUM)
        for k in range(16):
            p.v("v_fma_f32", CTX + k, CTX + k, INV, RES + k)
        for k in range(8):
            p.cvtpk(CTX + k, CTX + 2 * k, CTX + 2 * k + 1)
        for k in range(8):
            p.v("v_pk_max_i16", CTX + k, CTX + k, "0")
        base = 4096 * (F if F < 3 else 0)
        tok = f"E{F if F < 3 else 0}"
        for q in range(4):
            p.dsw("ds_write_b64", V_OW + q, CTX + 2 * q, 2, off=base, mw=[tok])
        for j in range(2):
            p.dsr("ds_read_b128", RES + 4 * j, 4, V_OR, off=base + 1024 * j, mr=[tok])
        for j in range(2):
            off = 4096 * F + 2048 * j
            p.store(RES + 4 * j, 4, V_OG, SRD_O, soff=("0" if F == 0 else f"s{S_K4+F-1}"), off=2048 * j)


HEADER = """; Kernarg layout for this problem (64 bytes, ptrs only, base s[0:1]):
; @launch grid=(256,1,1) block=(512,1,1) lds={lds}
.amdgcn_target "amdgcn-amd-amdhsa--gfx950"
.text
.globl {name}_kernel
.p2align 8
.type {name}_kernel,@function
{name}_kernel:
"""
FOOTER = """
L_end:
    s_endpgm
.section .rodata,"a"
.p2align 6
.amdhsa_kernel {name}_kernel
  .amdhsa_next_free_vgpr 256
  .amdhsa_next_free_sgpr 64
  .amdhsa_accum_offset 256
  .amdhsa_group_segment_fixed_size 0
  .amdhsa_kernarg_size 64
  .amdhsa_user_sgpr_count 2
  .amdhsa_user_sgpr_kernarg_segment_ptr 1
  .amdhsa_system_sgpr_workgroup_id_x 1
.end_amdhsa_kernel
"""


def build(do_sched=True):
    p = Prog()
    prologue(p)
    e_dma(p)
    lane_consts(p)
    p.raw("s_waitcnt vmcnt(13)")
    p.raw("s_barrier")
    head = p.ins
    q = Prog()
    slow_path(q)
    body = q.ins
    if do_sched:
        body, t = schedule(body, lookahead=200)
        print("modelled cycles", t, file=sys.stderr)
    ins = insert_waitcnts(head + body)
    ins = insert_nops(ins)
    return HEADER.format(name=NAME, lds=LDS_TOTAL) + emit(ins) + FOOTER.format(name=NAME)


if __name__ == "__main__":
    out = sys.argv[1] if len(sys.argv) > 1 else f"cdna_kernels/{NAME}.s"
    open(out, "w").write(build(do_sched="--nosched" not in sys.argv))
```

```python
import sys, struct, math
sys.path.insert(0, 'gen')
from asmlib import *

NAME = "standalone__attention_interact_autoint__recsys"
C_SCALE = math.log2(math.e) / math.sqrt(32.0)


def f32hex(x):
    return "0x%08x" % struct.unpack("<I", struct.pack("<f", x))[0]


CHEX = f32hex(C_SCALE)
W_BYTES = 32768
E_BYTES = 13312
LDS_TOTAL = W_BYTES + 8 * E_BYTES

SRD_E, SRD_W, SRD_O = 16, 20, 24
S_W, S_B, S_HD, S_EB = 28, 29, 30, 31
S_MASK = 32
S_WOFF = 34
S_K4 = 38
S_T = 42

V_L = 1
V_T0, V_T1, V_T2, V_T3 = 2, 3, 4, 5
V_EG0, V_EG1, V_WG = 6, 7, 8
V_ER = 9
V_E3 = 13
V_WR = 17
V_OW = 18
V_OR = 22
V_OG = 23
V_ONES = 24
V_CI = 28
V_P3 = 32
FREE = 36


def prologue(p):
    p.s("s_cmp_ge_u32 s2, 256", sw=["scc"], sr=["s2"])
    p.raw("s_cbranch_scc1 L_end")
    p.raw("s_load_dwordx8 s[4:11], s[0:1], 0")
    p.raw("s_load_dwordx4 s[12:15], s[0:1], 32")
    p.v("v_lshrrev_b32", V_T0, "6", 0)
    p.v("v_and_b32", V_L, "63", 0)
    p.raw(f"v_readfirstlane_b32 s{S_W}, v{V_T0}", kind="readlane", r=[V_T0], sw=[f"s{S_W}"])
    p.v("v_lshrrev_b32", V_T0, "3", V_L)
    p.v("v_lshlrev_b32", V_T0, "7", V_T0)
    p.v("v_lshrrev_b32", V_T1, "4", V_L)
    p.v("v_and_b32", V_T2, "7", V_L)
    p.v("v_xor_b32", V_T1, V_T1, V_T2)
    p.v("v_lshl_add_u32", V_EG0, V_T1, "4", V_T0)
    p.v("v_xor_b32", V_EG1, "64", V_EG0)
    p.v("v_lshlrev_b32", V_T0, "4", V_L)
    p.v("v_lshrrev_b32", V_T1, "2", V_L)
    p.v("v_lshlrev_b32", V_T1, "7", V_T1)
    p.v("v_and_b32", V_T2, "3", V_L)
    p.v("v_lshl_add_u32", V_T1, V_T2, "4", V_T1)
    p.s(f"s_lshr_b32 s{S_T}, s{S_W}, 1", sw=[f"s{S_T}", "scc"], sr=[f"s{S_W}"])
    p.s(f"s_and_b32 s{S_HD}, s{S_W}, 1", sw=[f"s{S_HD}", "scc"], sr=[f"s{S_W}"])
    p.s(f"s_lshl_b32 s{S_B}, s2, 2", sw=[f"s{S_B}", "scc"], sr=["s2"])
    p.s(f"s_add_u32 s{S_B}, s{S_B}, s{S_T}", sw=[f"s{S_B}", "scc"], sr=[f"s{S_B}", f"s{S_T}"])
    p.s(f"s_mul_i32 s{S_T+1}, s{S_B}, 12800", sw=[f"s{S_T+1}"], sr=[f"s{S_B}"])
    p.s(f"s_mul_i32 s{S_EB}, s{S_W}, {E_BYTES}", sw=[f"s{S_EB}"], sr=[f"s{S_W}"])
    p.s(f"s_add_u32 s{S_EB}, s{S_EB}, {W_BYTES}", sw=[f"s{S_EB}", "scc"], sr=[f"s{S_EB}"])
    p.s(f"s_movk_i32 s{S_K4}, 0x1000", sw=[f"s{S_K4}"])
    p.s(f"s_movk_i32 s{S_K4+1}, 0x2000", sw=[f"s{S_K4+1}"])
    p.s(f"s_movk_i32 s{S_K4+2}, 0x3000", sw=[f"s{S_K4+2}"])
    p.s(f"s_cmp_eq_u32 s{S_T}, 3", sw=["scc"], sr=[f"s{S_T}"])
    p.s(f"s_cselect_b64 s[{S_MASK}:{S_MASK+1}], -1, 0", sw=[f"s{S_MASK}", f"s{S_MASK+1}"], sr=["scc"])
    p.s(f"s_cselect_b32 s{S_T+2}, 6, 12", sw=[f"s{S_T+2}"], sr=["scc"])
    p.s(f"s_cselect_b32 s{S_T+3}, 0x400, 0", sw=[f"s{S_T+3}"], sr=["scc"])
    p.s(f"s_lshl_b32 s{S_WOFF}, s{S_HD}, s{S_T+2}", sw=[f"s{S_WOFF}", "scc"], sr=[f"s{S_HD}", f"s{S_T+2}"])
    for i in range(1, 4):
        p.s(f"s_add_u32 s{S_WOFF+i}, s{S_WOFF+i-1}, s{S_T+3}", sw=[f"s{S_WOFF+i}", "scc"], sr=[f"s{S_WOFF+i-1}", f"s{S_T+3}"])
    p.add(I(f"v_cndmask_b32 v{V_WG}, v{V_T0}, v{V_T1}, s[{S_MASK}:{S_MASK+1}]", "valu", w=[V_WG], r=[V_T0, V_T1],
            sr=[f"s{S_MASK}", f"s{S_MASK+1}"]))
    p.raw("s_waitcnt lgkmcnt(0)")
    p.s(f"s_add_u32 s{SRD_E}, s4, s{S_T+1}", sw=[f"s{SRD_E}", "scc"])
    p.s(f"s_addc_u32 s{SRD_E+1}, s5, 0", sw=[f"s{SRD_E+1}", "scc"])
    p.s(f"s_movk_i32 s{SRD_E+2}, 12800", sw=[f"s{SRD_E+2}"])
    p.s(f"s_mov_b32 s{SRD_E+3}, 0x20000", sw=[f"s{SRD_E+3}"])
    p.s(f"s_add_u32 s{SRD_O}, s14, s{S_T+1}", sw=[f"s{SRD_O}", "scc"])
    p.s(f"s_addc_u32 s{SRD_O+1}, s15, 0", sw=[f"s{SRD_O+1}", "scc"])
    p.s(f"s_movk_i32 s{SRD_O+2}, 12800", sw=[f"s{SRD_O+2}"])
    p.s(f"s_mov_b32 s{SRD_O+3}, 0x20000", sw=[f"s{SRD_O+3}"])
    p.s(f"s_mov_b64 s[{SRD_W}:{SRD_W+1}], s[6:7]", sw=[f"s{SRD_W}", f"s{SRD_W+1}"])
    for m in (1, 2, 3):
        p.s(f"s_cmp_eq_u32 s{S_T}, {m}", sw=["scc"])
        p.s(f"s_cselect_b64 s[{SRD_W}:{SRD_W+1}], s[{6+2*m}:{7+2*m}], s[{SRD_W}:{SRD_W+1}]", sw=[f"s{SRD_W}", f"s{SRD_W+1}"])
    p.s(f"s_movk_i32 s{SRD_W+2}, 0x2000", sw=[f"s{SRD_W+2}"])
    p.s(f"s_mov_b32 s{SRD_W+3}, 0x20000", sw=[f"s{SRD_W+3}"])
    p.s(f"s_lshl_b32 m0, s{S_W}, 12", sw=["m0", "scc"])
    for i in range(4):
        p.dma(V_WG, SRD_W, f"s{S_WOFF+i}", off=1024 * i, tok="W")


def e_dma(p, order=(0, 1, 2, 3)):
    for k in order:
        if k == 0:
            p.s(f"s_mov_b32 m0, s{S_EB}", sw=["m0"], sr=[f"s{S_EB}"])
        else:
            p.s(f"s_add_u32 m0, s{S_EB}, {4096*k}", sw=["m0", "scc"], sr=[f"s{S_EB}"])
        for j in range(4 if k < 3 else 1):
            p.dma(V_EG0 if j % 2 == 0 else V_EG1, SRD_E, "0" if k == 0 else f"s{S_K4+k-1}", off=1024 * j, tok=f"E{k}")


def lane_consts(p):
    T0, T1, T2, T3 = V_T0, V_T1, V_T2, V_T3
    p.v("v_and_b32", T0, "31", V_L)
    p.v("v_lshrrev_b32", T1, "5", V_L)
    p.v("v_bfe_u32", T2, V_L, "1", "3")
    p.v("v_xor_b32", T2, T2, T1)
    p.v("v_lshlrev_b32", T2, "4", T2)
    p.v("v_lshl_add_u32", T2, T0, "7", T2)
    p.v("v_add_u32", V_ER, f"s{S_EB}", T2)
    for s in (1, 2, 3):
        p.v("v_xor_b32", V_ER + s, str(32 * s) if 32 * s <= 64 else hex(32 * s), V_ER)
    p.v("v_and_b32", T2, "3", V_L)
    p.v("v_bfe_u32", T3, V_L, "1", "1")
    p.v("v_xor_b32", T3, T3, T1)
    p.v("v_lshlrev_b32", T3, "4", T3)
    p.v("v_lshl_add_u32", T3, T2, "7", T3)
    p.v("v_lshrrev_b32", T2, "2", T0)
    p.vcmp("v_cmp_eq_u32", "vcc", "0", T2)
    p.vcmp("v_cmp_eq_u32", f"s[{S_MASK}:{S_MASK+1}]", "5", T2)
    p.raw(f"s_or_b64 vcc, vcc, s[{S_MASK}:{S_MASK+1}]", kind="salu", sw=["vcc", "scc"], sr=["vcc", f"s{S_MASK}", f"s{S_MASK+1}"])
    p.v("v_mov_b32", T2, "0x200")
    p.add(I(f"v_cndmask_b32 v{T3}, v{T2}, v{T3}, vcc", "valu", w=[T3], r=[T2, T3], sr=["vcc"]))
    p.v("v_add_u32", T3, f"s{S_EB}", T3)
    p.v("v_add_u32", V_E3, "0x3000", T3)
    for s in (1, 2, 3):
        p.v("v_xor_b32", V_E3 + s, str(32 * s) if 32 * s <= 64 else hex(32 * s), V_E3)
    p.v("v_bfe_u32", T2, V_L, "2", "2")
    p.v("v_lshl_add_u32", T2, T1, "3", T2)
    p.v("v_lshlrev_b32", T2, "6", T2)
    p.v("v_bfe_u32", T3, V_L, "4", "1")
    p.v("v_lshl_add_u32", T2, T3, "5", T2)
    p.v("v_and_b32", T3, "3", V_L)
    p.v("v_lshl_add_u32", T2, T3, "3", T2)
    p.s(f"s_lshl_b32 s{S_T+4}, s{S_HD}, 12", sw=[f"s{S_T+4}", "scc"], sr=[f"s{S_HD}"])
    p.v("v_add_u32", V_WR, f"s{S_T+4}", T2)
    p.v("v_bfe_u32", T2, V_L, "1", "2")
    p.v("v_lshlrev_b32", T2, "4", T2)
    p.v("v_lshl_add_u32", T2, T0, "6", T2)
    p.v("v_lshl_add_u32", T2, T1, "3", T2)
    p.v("v_add_u32", V_OW, f"s{S_EB}", T2)
    for q in (1, 2, 3):
        p.v("v_xor_b32", V_OW + q, str(16 * q), V_OW)
    p.v("v_lshrrev_b32", T2, "2", V_L)
    p.v("v_bfe_u32", T3, V_L, "3", "2")
    p.v("v_and_b32", T0, "3", V_L)
    p.v("v_xor_b32", T3, T3, T0)
    p.v("v_lshlrev_b32", T3, "4", T3)
    p.v("v_lshl_add_u32", T3, T2, "6", T3)
    p.v("v_add_u32", V_OR, f"s{S_EB}", T3)
    p.v("v_lshlrev_b32", T0, "4", T0)
    p.v("v_lshl_add_u32", T0, T2, "7", T0)
    p.s(f"s_lshl_b32 s{S_T+4}, s{S_HD}, 6", sw=[f"s{S_T+4}", "scc"], sr=[f"s{S_HD}"])
    p.v("v_add_u32", V_OG, f"s{S_T+4}", T0)
    p.v("v_bfe_u32", T2, V_L, "2", "1")
    p.v("v_bfe_u32", T3, V_L, "4", "1")
    p.vcmp("v_cmp_eq_u32", "vcc", T2, T3)
    p.v("v_mov_b32", T2, "0x3f803f80")
    for k in range(4):
        p.add(I(f"v_cndmask_b32 v{V_ONES+k}, 0, v{T2}, vcc", "valu", w=[V_ONES + k], r=[T2], sr=["vcc"]))
    p.vcmp("v_cmp_lt_u32", "vcc", "31", V_L)
    p.v("v_mov_b32", T2, "0xff800000")
    for k in range(4):
        p.add(I(f"v_cndmask_b32 v{V_CI+k}, 0, v{T2}, vcc", "valu", w=[V_CI + k], r=[T2], sr=["vcc"]))
    p.v("v_mov_b32", V_P3 + 2, "0")
    p.v("v_mov_b32", V_P3 + 3, "0")


S_ST = 48
def stamp(p, k):
    p.raw(f"s_memrealtime s[56:57]", kind="misc")
    p.raw("s_waitcnt lgkmcnt(0)")
    p.raw(f"s_mov_b32 s{S_ST+k}, s56", kind="misc")


def stamp_out(p, n):
    p.raw("s_load_dwordx2 s[60:61], s[0:1], 48")
    p.raw("s_mov_b32 s62, 256")
    p.raw("s_mov_b32 s63, 0x20000")
    p.raw("s_waitcnt lgkmcnt(0)")
    p.raw("s_mov_b64 exec, 1")
    p.raw("v_mov_b32 v3, 0")
    for k in range(n):
        p.raw(f"v_mov_b32 v2, s{S_ST+k}")
        p.raw(f"buffer_atomic_umax v2, v3, s[60:63], 0 offen offset:{8*k}")
        p.raw(f"v_not_b32 v4, v2")
        p.raw(f"buffer_atomic_umax v4, v3, s[60:63], 0 offen offset:{8*k+4}")
        p.raw("s_waitcnt vmcnt(0)")


def read_w(p, dst, mat):
    for s in range(4):
        for u in range(2):
            p.dsr("ds_read_b64_tr_b16", dst + 4 * s + 2 * u, 2, V_WR, off=mat * 8192 + (16 * s + 4 * u) * 64, mr=["W"])


def read_e(p, dst, t):
    for s in range(4):
        if t < 3:
            p.dsr("ds_read_b128", dst + 4 * s, 4, V_ER + s, off=4096 * t, mr=[f"E{t}"], vm_need=f"E{t}")
        else:
            p.dsr("ds_read_b128", dst + 4 * s, 4, V_E3 + s, mr=["E3"], vm_need="E3")


def slow_path(p):
    r = FREE
    WK, WV, WQ, WR = r, r + 16, r + 32, r + 48
    r += 64
    KP = [r + 8 * t for t in range(4)]
    r += 32
    VP = [r + 8 * t for t in range(4)]
    r += 28
    QP = [r + 8 * t for t in range(4)]
    r += 32
    S = [r + 16 * t for t in range(3)]
    r += 48
    S3 = r
    r += 4
    SUM = r
    r += 4
    M, M2, INV = r, r + 1, r + 2
    EF = WK if False else None
    CTX, RES, EF2 = WK, WV, WQ
    read_w(p, WK, 1)
    read_w(p, WV, 2)
    read_w(p, WQ, 0)
    read_w(p, WR, 3)
    EF = S[2]
    for t in range(4):
        read_e(p, EF, t)
        for s in range(4):
            p.mfma32(S[0], WK + 4 * s, EF + 4 * s, S[0] if s else "0")
        for s in range(4):
            p.mfma32(S[1], EF + 4 * s, WV + 4 * s, S[1] if s else "0")
        for k in range(8):
            p.cvtpk(KP[t] + k, S[0] + 2 * k, S[0] + 2 * k + 1)
        for s in range(4):
            p.mfma32(S[0], WQ + 4 * s, EF + 4 * s, S[0] if s else "0")
        for k in range(8 if t < 3 else 4):
            p.cvtpk(VP[t] + k, S[1] + 2 * k, S[1] + 2 * k + 1)
        for k in range(16):
            p.v("v_mul_f32", S[0] + k, CHEX, S[0] + k)
        for k in range(8):
            p.cvtpk(QP[t] + k, S[0] + 2 * k, S[0] + 2 * k + 1)
    for F in range(4):
        read_e(p, EF2, F)
        for t in range(3):
            for s in range(2):
                p.mfma32(S[t], KP[t] + 4 * s, QP[F] + 4 * s, S[t] if s else "0")
        for s in range(2):
            p.mfma16(S3, KP[3] + 4 * s, QP[F] + 4 * s, S3 if s else V_CI)
        for s in range(4):
            p.mfma32(RES, WR + 4 * s, EF2 + 4 * s, RES if s else "0")
        regs = [S[t] + k for t in range(3) for k in range(16)] + [S3 + k for k in range(4)]
        p.v("v_max_f32", M, regs[0], regs[1])
        for k in range(2, 52, 2):
            p.v("v_max3_f32", M, M, regs[k], regs[k + 1])
        p.v("v_mov_b32", M2, M)
        p.swap32(M, M2)
        p.v("v_max_f32", M, M, M2)
        for x in regs:
            p.v("v_sub_f32", x, x, M)
            p.exp(x, x)
        for t in range(3):
            for s in range(2):
                for k in range(4):
                    p.cvtpk(S[t] + 8 * s + k, S[t] + 8 * s + 2 * k, S[t] + 8 * s + 2 * k + 1)
        p.cvtpk(V_P3, S3, S3 + 1)
        p.cvtpk(V_P3 + 1, S3 + 2, S3 + 3)
        first = True
        for t in range(4):
            for s in range(2 if t < 3 else 1):
                b = S[t] + 8 * s if t < 3 else V_P3
                p.mfma32(CTX, VP[t] + 4 * s, b, "0" if first else CTX)
                p.mfma16(SUM, V_ONES, b, "0" if first else SUM)
                first = False
        p.rcp(INV, SUM)
        for k in range(16):
            p.v("v_fma_f32", CTX + k, CTX + k, INV, RES + k)
        for k in range(8):
            p.cvtpk(CTX + k, CTX + 2 * k, CTX + 2 * k + 1)
        for k in range(8):
            p.v("v_pk_max_i16", CTX + k, CTX + k, "0")
        base = 4096 * (F if F < 3 else 0)
        tok = f"E{F if F < 3 else 0}"
        for q in range(4):
            p.dsw("ds_write_b64", V_OW + q, CTX + 2 * q, 2, off=base, mw=[tok])
        for j in range(2):
            p.dsr("ds_read_b128", RES + 4 * j, 4, V_OR, off=base + 1024 * j, mr=[tok])
        for j in range(2):
            off = 4096 * F + 2048 * j
            p.store(RES + 4 * j, 4, V_OG, SRD_O, soff=("0" if F == 0 else f"s{S_K4+F-1}"), off=2048 * j)


HEADER = """; Kernarg layout for this problem (64 bytes, ptrs only, base s[0:1]):
; @launch grid=(256,1,1) block=(512,1,1) lds={lds}
.amdgcn_target "amdgcn-amd-amdhsa--gfx950"
.text
.globl {name}_kernel
.p2align 8
.type {name}_kernel,@function
{name}_kernel:
"""
FOOTER = """
L_end:
    s_endpgm
.section .rodata,"a"
.p2align 6
.amdhsa_kernel {name}_kernel
  .amdhsa_next_free_vgpr 256
  .amdhsa_next_free_sgpr 64
  .amdhsa_accum_offset 256
  .amdhsa_group_segment_fixed_size 0
  .amdhsa_kernarg_size 64
  .amdhsa_user_sgpr_count 2
  .amdhsa_user_sgpr_kernarg_segment_ptr 1
  .amdhsa_system_sgpr_workgroup_id_x 1
.end_amdhsa_kernel
"""


def build(do_sched=True, stamps=False):
    p = Prog()
    if stamps:
        stamp(p, 0)
    prologue(p)
    e_dma(p)
    lane_consts(p)
    if stamps:
        stamp(p, 1)
    p.raw("s_waitcnt vmcnt(13)")
    p.raw("s_barrier")
    if stamps:
        stamp(p, 2)
        p.raw("s_waitcnt vmcnt(0)")
        stamp(p, 3)
    head = p.ins
    q = Prog()
    slow_path(q)
    body = q.ins
    if do_sched:
        body, t = schedule(body, lookahead=200)
        print("modelled cycles", t, file=sys.stderr)
    tail = Prog()
    if stamps:
        stamp(tail, 4)
        tail.raw("s_waitcnt vmcnt(0)")
        stamp(tail, 5)
        stamp_out(tail, 6)
    ins = insert_waitcnts(head + body + tail.ins)
    ins = insert_nops(ins)
    return HEADER.format(name=NAME, lds=LDS_TOTAL) + emit(ins) + FOOTER.format(name=NAME)


if __name__ == "__main__":
    out = sys.argv[1] if len(sys.argv) > 1 else f"cdna_kernels/{NAME}.s"
    open(out, "w").write(build(do_sched="--nosched" not in sys.argv, stamps="--stamps" in sys.argv))
```

```python
import sys, struct, math
sys.path.insert(0, 'gen')
from asmlib import *

NAME = "standalone__attention_interact_autoint__recsys"
C_SCALE = math.log2(math.e) / math.sqrt(32.0)


def f32hex(x):
    return "0x%08x" % struct.unpack("<I", struct.pack("<f", x))[0]


CHEX = f32hex(C_SCALE)
W_BYTES = 32768
E_BYTES = 13312
LDS_TOTAL = W_BYTES + 8 * E_BYTES

SRD_E, SRD_W, SRD_O = 16, 20, 24
S_W, S_B, S_HD, S_EB = 28, 29, 30, 31
S_MASK = 32
S_WOFF = 34
S_K4 = 38
S_T = 42

V_L = 1
V_T0, V_T1, V_T2, V_T3 = 2, 3, 4, 5
V_EG0, V_EG1, V_WG = 6, 7, 8
V_ER = 9
V_E3 = 13
V_WR = 17
V_OW = 18
V_OR = 22
V_OG = 23
V_ONES = 24
V_CI = 28
V_P3 = 32
FREE = 36


def prologue(p):
    p.s("s_cmp_ge_u32 s2, 256", sw=["scc"], sr=["s2"])
    p.raw("s_cbranch_scc1 L_end")
    p.raw("s_load_dwordx8 s[4:11], s[0:1], 0")
    p.raw("s_load_dwordx4 s[12:15], s[0:1], 32")
    p.v("v_lshrrev_b32", V_T0, "6", 0)
    p.v("v_and_b32", V_L, "63", 0)
    p.raw(f"v_readfirstlane_b32 s{S_W}, v{V_T0}", kind="readlane", r=[V_T0], sw=[f"s{S_W}"])
    p.v("v_lshrrev_b32", V_T0, "3", V_L)
    p.v("v_lshlrev_b32", V_T0, "7", V_T0)
    p.v("v_lshrrev_b32", V_T1, "4", V_L)
    p.v("v_and_b32", V_T2, "7", V_L)
    p.v("v_xor_b32", V_T1, V_T1, V_T2)
    p.v("v_lshl_add_u32", V_EG0, V_T1, "4", V_T0)
    p.v("v_xor_b32", V_EG1, "64", V_EG0)
    p.v("v_lshlrev_b32", V_T0, "4", V_L)
    p.v("v_lshrrev_b32", V_T1, "2", V_L)
    p.v("v_lshlrev_b32", V_T1, "7", V_T1)
    p.v("v_and_b32", V_T2, "3", V_L)
    p.v("v_lshl_add_u32", V_T1, V_T2, "4", V_T1)
    p.s(f"s_lshr_b32 s{S_T}, s{S_W}, 1", sw=[f"s{S_T}", "scc"], sr=[f"s{S_W}"])
    p.s(f"s_and_b32 s{S_HD}, s{S_W}, 1", sw=[f"s{S_HD}", "scc"], sr=[f"s{S_W}"])
    p.s(f"s_lshl_b32 s{S_B}, s2, 2", sw=[f"s{S_B}", "scc"], sr=["s2"])
    p.s(f"s_add_u32 s{S_B}, s{S_B}, s{S_T}", sw=[f"s{S_B}", "scc"], sr=[f"s{S_B}", f"s{S_T}"])
    p.s(f"s_mul_i32 s{S_T+1}, s{S_B}, 12800", sw=[f"s{S_T+1}"], sr=[f"s{S_B}"])
    p.s(f"s_mul_i32 s{S_EB}, s{S_W}, {E_BYTES}", sw=[f"s{S_EB}"], sr=[f"s{S_W}"])
    p.s(f"s_add_u32 s{S_EB}, s{S_EB}, {W_BYTES}", sw=[f"s{S_EB}", "scc"], sr=[f"s{S_EB}"])
    p.s(f"s_movk_i32 s{S_K4}, 0x1000", sw=[f"s{S_K4}"])
    p.s(f"s_movk_i32 s{S_K4+1}, 0x2000", sw=[f"s{S_K4+1}"])
    p.s(f"s_movk_i32 s{S_K4+2}, 0x3000", sw=[f"s{S_K4+2}"])
    p.s(f"s_cmp_eq_u32 s{S_T}, 3", sw=["scc"], sr=[f"s{S_T}"])
    p.s(f"s_cselect_b64 s[{S_MASK}:{S_MASK+1}], -1, 0", sw=[f"s{S_MASK}", f"s{S_MASK+1}"], sr=["scc"])
    p.s(f"s_cselect_b32 s{S_T+2}, 6, 12", sw=[f"s{S_T+2}"], sr=["scc"])
    p.s(f"s_cselect_b32 s{S_T+3}, 0x400, 0", sw=[f"s{S_T+3}"], sr=["scc"])
    p.s(f"s_lshl_b32 s{S_WOFF}, s{S_HD}, s{S_T+2}", sw=[f"s{S_WOFF}", "scc"], sr=[f"s{S_HD}", f"s{S_T+2}"])
    for i in range(1, 4):
        p.s(f"s_add_u32 s{S_WOFF+i}, s{S_WOFF+i-1}, s{S_T+3}", sw=[f"s{S_WOFF+i}", "scc"], sr=[f"s{S_WOFF+i-1}", f"s{S_T+3}"])
    p.add(I(f"v_cndmask_b32 v{V_WG}, v{V_T0}, v{V_T1}, s[{S_MASK}:{S_MASK+1}]", "valu", w=[V_WG], r=[V_T0, V_T1],
            sr=[f"s{S_MASK}", f"s{S_MASK+1}"]))
    p.raw("s_waitcnt lgkmcnt(0)")
    p.s(f"s_add_u32 s{SRD_E}, s4, s{S_T+1}", sw=[f"s{SRD_E}", "scc"])
    p.s(f"s_addc_u32 s{SRD_E+1}, s5, 0", sw=[f"s{SRD_E+1}", "scc"])
    p.s(f"s_movk_i32 s{SRD_E+2}, 12800", sw=[f"s{SRD_E+2}"])
    p.s(f"s_mov_b32 s{SRD_E+3}, 0x20000", sw=[f"s{SRD_E+3}"])
    p.s(f"s_add_u32 s{SRD_O}, s14, s{S_T+1}", sw=[f"s{SRD_O}", "scc"])
    p.s(f"s_addc_u32 s{SRD_O+1}, s15, 0", sw=[f"s{SRD_O+1}", "scc"])
    p.s(f"s_movk_i32 s{SRD_O+2}, 12800", sw=[f"s{SRD_O+2}"])
    p.s(f"s_mov_b32 s{SRD_O+3}, 0x20000", sw=[f"s{SRD_O+3}"])
    p.s(f"s_mov_b64 s[{SRD_W}:{SRD_W+1}], s[6:7]", sw=[f"s{SRD_W}", f"s{SRD_W+1}"])
    for m in (1, 2, 3):
        p.s(f"s_cmp_eq_u32 s{S_T}, {m}", sw=["scc"])
        p.s(f"s_cselect_b64 s[{SRD_W}:{SRD_W+1}], s[{6+2*m}:{7+2*m}], s[{SRD_W}:{SRD_W+1}]", sw=[f"s{SRD_W}", f"s{SRD_W+1}"])
    p.s(f"s_movk_i32 s{SRD_W+2}, 0x2000", sw=[f"s{SRD_W+2}"])
    p.s(f"s_mov_b32 s{SRD_W+3}, 0x20000", sw=[f"s{SRD_W+3}"])
    p.s(f"s_lshl_b32 m0, s{S_W}, 12", sw=["m0", "scc"])
    for i in range(4):
        p.dma(V_WG, SRD_W, f"s{S_WOFF+i}", off=1024 * i, tok="W")


def e_dma(p, order=(0, 1, 2, 3)):
    for k in order:
        if k == 0:
            p.s(f"s_mov_b32 m0, s{S_EB}", sw=["m0"], sr=[f"s{S_EB}"])
        else:
            p.s(f"s_add_u32 m0, s{S_EB}, {4096*k}", sw=["m0", "scc"], sr=[f"s{S_EB}"])
        for j in range(4 if k < 3 else 1):
            p.dma(V_EG0 if j % 2 == 0 else V_EG1, SRD_E, "0" if k == 0 else f"s{S_K4+k-1}", off=1024 * j, tok=f"E{k}")


def lane_consts(p):
    T0, T1, T2, T3 = V_T0, V_T1, V_T2, V_T3
    p.v("v_and_b32", T0, "31", V_L)
    p.v("v_lshrrev_b32", T1, "5", V_L)
    p.v("v_bfe_u32", T2, V_L, "1", "3")
    p.v("v_xor_b32", T2, T2, T1)
    p.v("v_lshlrev_b32", T2, "4", T2)
    p.v("v_lshl_add_u32", T2, T0, "7", T2)
    p.v("v_add_u32", V_ER, f"s{S_EB}", T2)
    for s in (1, 2, 3):
        p.v("v_xor_b32", V_ER + s, str(32 * s) if 32 * s <= 64 else hex(32 * s), V_ER)
    p.v("v_and_b32", T2, "3", V_L)
    p.v("v_bfe_u32", T3, V_L, "1", "1")
    p.v("v_xor_b32", T3, T3, T1)
    p.v("v_lshlrev_b32", T3, "4", T3)
    p.v("v_lshl_add_u32", T3, T2, "7", T3)
    p.v("v_lshrrev_b32", T2, "2", T0)
    p.vcmp("v_cmp_eq_u32", "vcc", "0", T2)
    p.vcmp("v_cmp_eq_u32", f"s[{S_MASK}:{S_MASK+1}]", "5", T2)
    p.raw(f"s_or_b64 vcc, vcc, s[{S_MASK}:{S_MASK+1}]", kind="salu", sw=["vcc", "scc"], sr=["vcc", f"s{S_MASK}", f"s{S_MASK+1}"])
    p.v("v_mov_b32", T2, "0x200")
    p.add(I(f"v_cndmask_b32 v{T3}, v{T2}, v{T3}, vcc", "valu", w=[T3], r=[T2, T3], sr=["vcc"]))
    p.v("v_add_u32", T3, f"s{S_EB}", T3)
    p.v("v_add_u32", V_E3, "0x3000", T3)
    for s in (1, 2, 3):
        p.v("v_xor_b32", V_E3 + s, str(32 * s) if 32 * s <= 64 else hex(32 * s), V_E3)
    p.v("v_bfe_u32", T2, V_L, "2", "2")
    p.v("v_lshl_add_u32", T2, T1, "3", T2)
    p.v("v_lshlrev_b32", T2, "6", T2)
    p.v("v_bfe_u32", T3, V_L, "4", "1")
    p.v("v_lshl_add_u32", T2, T3, "5", T2)
    p.v("v_and_b32", T3, "3", V_L)
    p.v("v_lshl_add_u32", T2, T3, "3", T2)
    p.s(f"s_lshl_b32 s{S_T+4}, s{S_HD}, 12", sw=[f"s{S_T+4}", "scc"], sr=[f"s{S_HD}"])
    p.v("v_add_u32", V_WR, f"s{S_T+4}", T2)
    p.v("v_bfe_u32", T2, V_L, "1", "2")
    p.v("v_lshlrev_b32", T2, "4", T2)
    p.v("v_lshl_add_u32", T2, T0, "6", T2)
    p.v("v_lshl_add_u32", T2, T1, "3", T2)
    p.v("v_add_u32", V_OW, f"s{S_EB}", T2)
    for q in (1, 2, 3):
        p.v("v_xor_b32", V_OW + q, str(16 * q), V_OW)
    p.v("v_lshrrev_b32", T2, "2", V_L)
    p.v("v_bfe_u32", T3, V_L, "3", "2")
    p.v("v_and_b32", T0, "3", V_L)
    p.v("v_xor_b32", T3, T3, T0)
    p.v("v_lshlrev_b32", T3, "4", T3)
    p.v("v_lshl_add_u32", T3, T2, "6", T3)
    p.v("v_add_u32", V_OR, f"s{S_EB}", T3)
    p.v("v_lshlrev_b32", T0, "4", T0)
    p.v("v_lshl_add_u32", T0, T2, "7", T0)
    p.s(f"s_lshl_b32 s{S_T+4}, s{S_HD}, 6", sw=[f"s{S_T+4}", "scc"], sr=[f"s{S_HD}"])
    p.v("v_add_u32", V_OG, f"s{S_T+4}", T0)
    p.v("v_bfe_u32", T2, V_L, "2", "1")
    p.v("v_bfe_u32", T3, V_L, "4", "1")
    p.vcmp("v_cmp_eq_u32", "vcc", T2, T3)
    p.v("v_mov_b32", T2, "0x3f803f80")
    for k in range(4):
        p.add(I(f"v_cndmask_b32 v{V_ONES+k}, 0, v{T2}, vcc", "valu", w=[V_ONES + k], r=[T2], sr=["vcc"]))
    p.vcmp("v_cmp_lt_u32", "vcc", "31", V_L)
    p.v("v_mov_b32", T2, "0xff800000")
    for k in range(4):
        p.add(I(f"v_cndmask_b32 v{V_CI+k}, 0, v{T2}, vcc", "valu", w=[V_CI + k], r=[T2], sr=["vcc"]))
    p.v("v_mov_b32", V_P3 + 2, "0")
    p.v("v_mov_b32", V_P3 + 3, "0")


S_ST = 48
def stamp(p, k):
    p.raw(f"s_memrealtime s[56:57]", kind="misc")
    p.raw("s_waitcnt lgkmcnt(0)")
    p.raw(f"s_mov_b32 s{S_ST+k}, s56", kind="misc")


def stamp_out(p, n):
    p.raw(f"s_add_u32 s58, s{S_W}, 1")
    p.raw("s_and_b32 s58, s58, 6")
    p.raw("s_cmp_lg_u32 s58, 0")
    p.raw("s_cbranch_scc1 L_end")
    p.raw("s_load_dwordx2 s[60:61], s[0:1], 48")
    p.raw("s_mov_b32 s62, 256")
    p.raw("s_mov_b32 s63, 0x20000")
    p.raw("s_waitcnt lgkmcnt(0)")
    p.raw("v_mov_b32 v2, 0")
    for k in range(n):
        p.raw(f"s_not_b32 s58, s{S_ST+k}")
        p.raw(f"v_writelane_b32 v2, s{S_ST+k}, {2*k}")
        p.raw(f"v_writelane_b32 v2, s58, {2*k+1}")
    p.raw(f"v_lshlrev_b32 v3, 2, v{V_L}")
    p.raw(f"s_mov_b64 exec, {hex((1 << (2*n)) - 1)}")
    p.raw(f"buffer_atomic_umax v2, v3, s[60:63], 0 offen")


def read_w(p, dst, mat):
    for s in range(4):
        for u in range(2):
            p.dsr("ds_read_b64_tr_b16", dst + 4 * s + 2 * u, 2, V_WR, off=mat * 8192 + (16 * s + 4 * u) * 64, mr=["W"])


def read_e(p, dst, t):
    for s in range(4):
        if t < 3:
            p.dsr("ds_read_b128", dst + 4 * s, 4, V_ER + s, off=4096 * t, mr=[f"E{t}"], vm_need=f"E{t}")
        else:
            p.dsr("ds_read_b128", dst + 4 * s, 4, V_E3 + s, mr=["E3"], vm_need="E3")


def slow_path(p):
    r = FREE
    WK, WV, WQ, WR = r, r + 16, r + 32, r + 48
    r += 64
    KP = [r + 8 * t for t in range(4)]
    r += 32
    VP = [r + 8 * t for t in range(4)]
    r += 28
    QP = [r + 8 * t for t in range(4)]
    r += 32
    S = [r + 16 * t for t in range(3)]
    r += 48
    S3 = r
    r += 4
    SUM = r
    r += 4
    M, M2, INV = r, r + 1, r + 2
    EF = WK if False else None
    CTX, RES, EF2 = WK, WV, WQ
    read_w(p, WK, 1)
    read_w(p, WV, 2)
    read_w(p, WQ, 0)
    read_w(p, WR, 3)
    EF = S[2]
    for t in range(4):
        read_e(p, EF, t)
        for s in range(4):
            p.mfma32(S[0], WK + 4 * s, EF + 4 * s, S[0] if s else "0")
        for s in range(4):
            p.mfma32(S[1], EF + 4 * s, WV + 4 * s, S[1] if s else "0")
        for k in range(8):
            p.cvtpk(KP[t] + k, S[0] + 2 * k, S[0] + 2 * k + 1)
        for s in range(4):
            p.mfma32(S[0], WQ + 4 * s, EF + 4 * s, S[0] if s else "0")
        for k in range(8 if t < 3 else 4):
            p.cvtpk(VP[t] + k, S[1] + 2 * k, S[1] + 2 * k + 1)
        for k in range(16):
            p.v("v_mul_f32", S[0] + k, CHEX, S[0] + k)
        for k in range(8):
            p.cvtpk(QP[t] + k, S[0] + 2 * k, S[0] + 2 * k + 1)
    for F in range(4):
        read_e(p, EF2, F)
        for t in range(3):
            for s in range(2):
                p.mfma32(S[t], KP[t] + 4 * s, QP[F] + 4 * s, S[t] if s else "0")
        for s in range(2):
            p.mfma16(S3, KP[3] + 4 * s, QP[F] + 4 * s, S3 if s else V_CI)
        for s in range(4):
            p.mfma32(RES, WR + 4 * s, EF2 + 4 * s, RES if s else "0")
        regs = [S[t] + k for t in range(3) for k in range(16)] + [S3 + k for k in range(4)]
        p.v("v_max_f32", M, regs[0], regs[1])
        for k in range(2, 52, 2):
            p.v("v_max3_f32", M, M, regs[k], regs[k + 1])
        p.v("v_mov_b32", M2, M)
        p.swap32(M, M2)
        p.v("v_max_f32", M, M, M2)
        for x in regs:
            p.v("v_sub_f32", x, x, M)
            p.exp(x, x)
        for t in range(3):
            for s in range(2):
                for k in range(4):
                    p.cvtpk(S[t] + 8 * s + k, S[t] + 8 * s + 2 * k, S[t] + 8 * s + 2 * k + 1)
        p.cvtpk(V_P3, S3, S3 + 1)
        p.cvtpk(V_P3 + 1, S3 + 2, S3 + 3)
        first = True
        for t in range(4):
            for s in range(2 if t < 3 else 1):
                b = S[t] + 8 * s if t < 3 else V_P3
                p.mfma32(CTX, VP[t] + 4 * s, b, "0" if first else CTX)
                p.mfma16(SUM, V_ONES, b, "0" if first else SUM)
                first = False
        p.rcp(INV, SUM)
        for k in range(16):
            p.v("v_fma_f32", CTX + k, CTX + k, INV, RES + k)
        for k in range(8):
            p.cvtpk(CTX + k, CTX + 2 * k, CTX + 2 * k + 1)
        for k in range(8):
            p.v("v_pk_max_i16", CTX + k, CTX + k, "0")
        base = 4096 * (F if F < 3 else 0)
        tok = f"E{F if F < 3 else 0}"
        for q in range(4):
            p.dsw("ds_write_b64", V_OW + q, CTX + 2 * q, 2, off=base, mw=[tok])
        for j in range(2):
            p.dsr("ds_read_b128", RES + 4 * j, 4, V_OR, off=base + 1024 * j, mr=[tok])
        for j in range(2):
            off = 4096 * F + 2048 * j
            p.store(RES + 4 * j, 4, V_OG, SRD_O, soff=("0" if F == 0 else f"s{S_K4+F-1}"), off=2048 * j)


HEADER = """; Kernarg layout for this problem (64 bytes, ptrs only, base s[0:1]):
; @launch grid=(256,1,1) block=(512,1,1) lds={lds}
.amdgcn_target "amdgcn-amd-amdhsa--gfx950"
.text
.globl {name}_kernel
.p2align 8
.type {name}_kernel,@function
{name}_kernel:
"""
FOOTER = """
L_end:
    s_endpgm
.section .rodata,"a"
.p2align 6
.amdhsa_kernel {name}_kernel
  .amdhsa_next_free_vgpr 256
  .amdhsa_next_free_sgpr 64
  .amdhsa_accum_offset 256
  .amdhsa_group_segment_fixed_size 0
  .amdhsa_kernarg_size 64
  .amdhsa_user_sgpr_count 2
  .amdhsa_user_sgpr_kernarg_segment_ptr 1
  .amdhsa_system_sgpr_workgroup_id_x 1
.end_amdhsa_kernel
"""


def build(do_sched=True, stamps=False):
    p = Prog()
    if stamps:
        stamp(p, 0)
    prologue(p)
    e_dma(p)
    lane_consts(p)
    if stamps:
        stamp(p, 1)
    p.raw("s_waitcnt vmcnt(13)")
    p.raw("s_barrier")
    if stamps:
        stamp(p, 2)
        p.raw("s_waitcnt vmcnt(0)")
        stamp(p, 3)
    head = p.ins
    q = Prog()
    slow_path(q)
    body = q.ins
    if do_sched:
        body, t = schedule(body, lookahead=200)
        print("modelled cycles", t, file=sys.stderr)
    tail = Prog()
    if stamps:
        stamp(tail, 4)
        tail.raw("s_waitcnt vmcnt(0)")
        stamp(tail, 5)
        stamp_out(tail, 6)
    ins = insert_waitcnts(head + body + tail.ins)
    ins = insert_nops(ins)
    return HEADER.format(name=NAME, lds=LDS_TOTAL) + emit(ins) + FOOTER.format(name=NAME)


if __name__ == "__main__":
    out = sys.argv[1] if len(sys.argv) > 1 else f"cdna_kernels/{NAME}.s"
    open(out, "w").write(build(do_sched="--nosched" not in sys.argv, stamps="--stamps" in sys.argv))
```
